```python
import torch

def _softmax(x, axis=-1):
    return torch.softmax(x, dim=axis)
def _gelu(x):
    return torch.nn.functional.gelu(x, approximate="tanh")
def _silu(x):
    return torch.nn.functional.silu(x)
def _sigmoid(x):
    return torch.sigmoid(x)
def _layernorm(x, axis=-1, eps=1e-5):
    m = x.mean(dim=axis, keepdim=True)
    v = x.var(dim=axis, keepdim=True, unbiased=False)
    return (x - m) / torch.sqrt(v + eps)
def _scatter_add(tgt, idx, src, axis=0):
    return tgt.clone().index_add_(axis, idx, src)
def _segment_sum(src, seg, n):
    out = torch.zeros((n,) + src.shape[1:], dtype=src.dtype)
    return out.index_add_(0, seg, src)
def _pad(x, pw):
    flat = tuple(v for pair in reversed(pw) for v in pair)
    return torch.nn.functional.pad(x, flat)

kernel_name = 'standalone__modern_conv_block_convnext_v2__vision'

def setup_inputs():

    _w = (lambda a: (lambda t: t.to(torch.bfloat16) if t.is_floating_point() else t)(torch.as_tensor(a)))
    H = W = 384
    C = 192
    K = 1
    return {
        "x": _w((lambda *s: torch.randn(*s, dtype=torch.bfloat16) * 0.05)(1, H, W, C)),
        "dw": _w((lambda *s: torch.randn(*s, dtype=torch.bfloat16) * 0.05)(K, K, C)),
        "w1": _w((lambda *s: torch.randn(*s, dtype=torch.bfloat16) * 0.05)(C, 4 * C)),
        "w2": _w((lambda *s: torch.randn(*s, dtype=torch.bfloat16) * 0.05)(4 * C, C)),
        "grn_gamma": _w((lambda *s: torch.randn(*s, dtype=torch.bfloat16) * 0.05)(4 * C)),
        "grn_beta": _w((lambda *s: torch.randn(*s, dtype=torch.bfloat16) * 0.05)(4 * C)),
    }

def reference(x, dw, w1, w2, grn_gamma, grn_beta):
    B, H, W, C = x.shape
    K = dw.shape[0]
    pad = K // 2
    xp = _pad(x, ((0,0),(pad,pad),(pad,pad),(0,0)))
    out = torch.zeros_like(x)
    for i in range(K):
        for j in range(K):
            out = out + xp[:, i:i+H, j:j+W, :] * dw[i, j][None, None, None, :]
    h = _layernorm(out, axis=-1)
    h = torch.einsum('bhwc,ce->bhwe', h, w1)
    h = _gelu(h)
    gx = torch.sqrt((h * h).sum(axis=(1, 2), keepdims=True) + 1e-6)
    nx = gx / (gx.mean(axis=-1, keepdims=True) + 1e-6)
    h = grn_gamma * (h * nx) + grn_beta + h
    h = torch.einsum('bhwe,ec->bhwc', h, w2)
    return x + h
```

```python
import re

TRANS = ('v_exp_f32', 'v_rcp_f32', 'v_rsq_f32', 'v_sqrt_f32', 'v_log_f32')
RMW = ('v_fmac_f32', 'v_writelane_b32', 'v_dot2c')


def regs_of(tok):
    tok = tok.strip()
    tok = tok.lstrip('-')
    m = re.fullmatch(r'abs\((.*)\)', tok)
    if m:
        tok = m.group(1)
    m = re.fullmatch(r'([vas])\[(\d+):(\d+)\]', tok)
    if m:
        return {(m.group(1), i) for i in range(int(m.group(2)), int(m.group(3)) + 1)}
    m = re.fullmatch(r'([vas])(\d+)', tok)
    if m:
        return {(m.group(1), int(m.group(2)))}
    if tok == 'vcc':
        return {('x', 'vcc')}
    if tok == 'm0':
        return {('x', 'm0')}
    if tok == 'exec':
        return {('x', 'exec')}
    return set()


class Ins:
    __slots__ = ('text', 'mn', 'ops', 'w', 'r', 'kind', 'tag', 'wait', 'N', 'srcC', 'label', 'comment')

    def __init__(self, text, tag=None):
        self.text = text
        self.tag = tag
        self.wait = None
        self.N = {}
        self.label = None
        self.srcC = set()
        t = text.strip()
        if t.endswith(':') or t.startswith('.') or t.startswith(';'):
            self.mn = ''
            self.ops = []
            self.w = set(); self.r = set(); self.kind = 'label'
            return
        parts = t.split(None, 1)
        mn = parts[0]
        self.mn = mn
        rest = parts[1] if len(parts) > 1 else ''
        ops = []
        depth = 0; cur = ''
        for ch in rest:
            if ch == '[' or ch == '(':
                depth += 1
            if ch == ']' or ch == ')':
                depth -= 1
            if ch == ',' and depth == 0:
                ops.append(cur.strip()); cur = ''
            else:
                cur += ch
        if cur.strip():
            ops.append(cur.strip())
        mods = ''
        if ops:
            last = ops[-1].split(None, 1)
            ops[-1] = last[0]
            mods = last[1] if len(last) > 1 else ''
        self.ops = ops
        R = [regs_of(o) for o in ops]
        allr = set().union(*R) if R else set()
        if mn.startswith('v_mfma'):
            self.kind = 'mfma'; self.w = R[0]; self.r = R[1] | R[2] | R[3]; self.srcC = R[3]
        elif mn.startswith('ds_read'):
            self.kind = 'ds'; self.w = R[0]; self.r = R[1]
        elif mn.startswith('ds_write') or mn.startswith('ds_add'):
            self.kind = 'ds'; self.w = set(); self.r = allr
        elif mn.startswith('buffer_load') or mn.startswith('global_load'):
            self.kind = 'vm'
            if re.search(r'\blds\b', mods):
                self.w = set(); self.r = allr | {('x', 'm0')}
            else:
                self.w = R[0]; self.r = set().union(*R[1:])
        elif mn.startswith('buffer_store') or mn.startswith('global_store'):
            self.kind = 'vm'; self.w = set(); self.r = allr
        elif mn.startswith('buffer_atomic') or mn.startswith('global_atomic'):
            self.kind = 'vm'; self.r = allr
            self.w = R[0] if re.search(r'\bsc0\b', mods) else set()
        elif mn in ('buffer_inv', 'buffer_wbl2'):
            self.kind = 'vm'; self.w = set(); self.r = set()
        elif mn.startswith('s_load') or mn.startswith('s_memtime') or mn.startswith('s_memrealtime'):
            self.kind = 'smem'; self.w = R[0]; self.r = set().union(*R[1:]) if len(R) > 1 else set()
        elif mn == 's_waitcnt':
            self.kind = 'wait'; self.w = set(); self.r = set()
        elif mn == 's_nop':
            self.kind = 'nop'; self.w = set(); self.r = set()
        elif mn in ('s_barrier', 's_endpgm', 's_sleep', 's_setprio') or mn.startswith('s_cbranch') or mn == 's_branch':
            self.kind = 'ctl'; self.w = set(); self.r = set()
        elif mn.startswith('s_cmp'):
            self.kind = 'salu'; self.w = set(); self.r = allr
        elif mn.startswith('s_'):
            self.kind = 'salu'; self.w = R[0]; self.r = set().union(*R[1:]) if len(R) > 1 else set()
        elif mn.startswith('v_'):
            self.kind = 'valu'
            self.w = R[0]; self.r = set().union(*R[1:]) if len(R) > 1 else set()
            if mn.startswith('v_permlane') and 'swap' in mn:
                self.w = R[0] | R[1]; self.r = R[0] | R[1]
            if mn.startswith(RMW):
                self.r = self.r | R[0]
            if mn.endswith('_dpp'):
                self.r = self.r | R[0]
            if mn.startswith('v_cndmask') and len(ops) == 3:
                self.r = self.r | {('x', 'vcc')}
        else:
            raise ValueError('unknown instruction ' + t)

    def is_trans(self):
        return self.mn.startswith(TRANS)

    def is_dpp(self):
        return self.mn.endswith('_dpp')

    def states(self):
        if self.kind == 'label':
            return 0
        if self.kind == 'nop':
            return int(self.ops[0]) + 1
        return 1

    def render(self):
        if self.wait is not None:
            p = []
            if 'vm' in self.N:
                p.append(f'vmcnt({self.N["vm"]})')
            if 'lg' in self.N:
                p.append(f'lgkmcnt({self.N["lg"]})')
            if not p:
                return '    s_nop 0'
            return '    s_waitcnt ' + ' '.join(p)
        if self.kind == 'label':
            return self.text
        return '    ' + self.text


class Block:
    def __init__(self):
        self.ins = []

    def e(self, text, tag=None):
        i = Ins(text, tag)
        self.ins.append(i)
        return i

    def add(self, ins):
        self.ins.append(ins)

    def extend(self, lst):
        for x in lst:
            if isinstance(x, str):
                self.e(x)
            else:
                self.ins.append(x)

    def wait(self, regs=None, tags=None):
        self.ins.append(mkwait(regs, tags))


def mkwait(regs=None, tags=None):
    i = Ins('s_waitcnt x')
    rs = set()
    for t in (regs or []):
        rs |= regs_of(t)
    i.wait = dict(regs=rs, tags=list(tags or []))
    return i


def trace(segments):
    out = []
    for blk, it in segments:
        for i in blk.ins:
            out.append((i, it))
    return out


def _abs(tag, it):
    return (tag[0], it + tag[1])


def resolve_waits(tr):
    cap = {'lg': 15, 'vm': 63}
    ops = {'lg': [], 'vm': []}
    done = {'lg': 0, 'vm': 0}
    for ins, it in tr:
        if ins.kind == 'ds':
            ops['lg'].append((ins.w, _abs(ins.tag, it) if ins.tag else None))
        elif ins.kind == 'vm':
            ops['vm'].append((ins.w, _abs(ins.tag, it) if ins.tag else None))
        elif ins.kind == 'wait' and ins.wait is not None:
            want = {_abs(t, it) for t in ins.wait['tags']}
            for c in ('lg', 'vm'):
                last = -1
                for k in range(len(ops[c]) - 1, -1, -1):
                    w, tg = ops[c][k]
                    if (w & ins.wait['regs']) or (tg is not None and tg in want):
                        last = k
                        break
                if last >= 0 and last >= done[c]:
                    n = len(ops[c]) - 1 - last
                    n = min(n, cap[c])
                    ins.N[c] = min(ins.N.get(c, 99), n)
        if ins.kind == 'wait' and ins.wait is None:
            m = re.search(r'vmcnt\((\d+)\)', ins.text)
            if m:
                done['vm'] = max(done['vm'], len(ops['vm']) - int(m.group(1)))
            m = re.search(r'lgkmcnt\((\d+)\)', ins.text)
            if m:
                done['lg'] = max(done['lg'], len(ops['lg']) - int(m.group(1)))


def check_waits(tr):
    pend = {'lg': [], 'vm': []}
    errs = []
    smem = set()
    for n, (ins, it) in enumerate(tr):
        if ins.kind == 'label':
            continue
        if ins.kind == 'wait':
            txt = ins.render()
            m = re.search(r'vmcnt\((\d+)\)', txt)
            if m:
                k = int(m.group(1))
                pend['vm'] = pend['vm'][len(pend['vm']) - k:] if k < len(pend['vm']) else pend['vm']
                if k == 0:
                    pend['vm'] = []
            m = re.search(r'lgkmcnt\((\d+)\)', txt)
            if m:
                k = int(m.group(1))
                if k == 0:
                    pend['lg'] = []
                    smem = set()
                elif smem:
                    errs.append(f'counted lgkm wait with smem outstanding at {n}: {txt}')
                else:
                    pend['lg'] = pend['lg'][len(pend['lg']) - k:] if k < len(pend['lg']) else pend['lg']
            continue
        touch = ins.r | ins.w
        for c in ('lg', 'vm'):
            for w, t in pend[c]:
                if w & touch:
                    if ins.kind == {'lg': 'ds', 'vm': 'vm'}[c] and not (w & ins.r):
                        continue
                    errs.append(f'pending {c} load [{t}] touched by [{ins.text}] it={it}')
        if smem & touch:
            errs.append(f'pending smem touched by [{ins.text}]')
        if ins.kind == 'ds':
            pend['lg'].append((ins.w, ins.text))
        elif ins.kind == 'vm':
            pend['vm'].append((ins.w, ins.text))
        elif ins.kind == 'smem':
            smem |= ins.w
            pend['lg'].append((set(), ins.text))
    return errs


def mfma_passes(mn):
    return 8 if '32x32' in mn else 4


def check_hazards(tr):
    errs = []
    seq = [(i, it) for i, it in tr if i.kind != 'label']
    W = 24
    for n, (b, it) in enumerate(seq):
        dist = 0
        for k in range(n - 1, max(-1, n - W - 1), -1):
            a = seq[k][0]
            need = 0
            why = ''
            vw = {x for x in a.w if x[0] in 'va'}
            if a.kind == 'valu':
                if b.kind == 'mfma' and (vw & b.r):
                    need, why = 2, 'valu->mfma'
                if b.kind == 'valu' and b.is_dpp() and (vw & b.r):
                    need, why = max(need, 2), 'valu->dpp'
                if b.kind == 'valu' and b.mn.startswith('v_permlane') and (vw & b.r):
                    need, why = max(need, 2), 'valu->permlane'
                if b.kind == 'valu' and b.mn.startswith(('v_readlane', 'v_readfirstlane')) and (vw & b.r):
                    need, why = max(need, 1), 'valu->readlane'
                if a.is_trans() and b.kind == 'valu' and not b.is_trans() and (vw & b.r):
                    need, why = max(need, 1), 'trans->valu'
                if a.mn.startswith('v_dot2') and (vw & (b.r | b.w)) and b.kind in ('valu', 'mfma', 'ds', 'vm') and b.mn != a.mn:
                    need, why = max(need, 3), 'dot->other'
                if a.mn.startswith('v_dot2') and b.mn == a.mn and (vw & (regs_of(b.ops[1]) | regs_of(b.ops[2]))):
                    need, why = max(need, 3), 'dot->dotAB'
                sw = {x for x in a.w if x[0] in 'sx'}
                if sw & b.r:
                    if b.kind == 'vm':
                        need, why = max(need, 5), 'valu sgpr->vmem'
                    elif b.kind == 'valu':
                        need, why = max(need, 4 if b.mn.startswith(('v_readlane', 'v_writelane')) else 2), 'valu sgpr->valu'
            if a.kind == 'mfma':
                p = mfma_passes(a.mn)
                big = 8 if p == 4 else 12
                if b.kind == 'mfma':
                    ab = regs_of(b.ops[1]) | regs_of(b.ops[2])
                    if a.w & ab:
                        need, why = big, 'mfma->mfma AB'
                    elif a.w & b.srcC and not (a.w == b.srcC and a.mn == b.mn):
                        need, why = big - 2, 'mfma->mfma C overlap'
                    elif (a.w & b.w) and not (a.w & b.srcC):
                        need, why = big - 2, 'mfma->mfma WAW'
                elif b.kind in ('valu', 'ds', 'vm') and (a.w & (b.r | b.w)):
                    need, why = big, 'mfma->valu/mem'
                if b.kind == 'valu' and (a.srcC & b.w):
                    need, why = max(need, 3 if p == 4 else 7), (why or 'mfma C WAR')
            if a.kind == 'vm' and ('store_dwordx4' in a.mn or 'store_dwordx3' in a.mn):
                data = regs_of(a.ops[0]) if a.mn.startswith('buffer') else regs_of(a.ops[1])
                if data & b.w:
                    need, why = max(need, 2 if b.kind in ('valu', 'mfma') else 1), 'store data WAR'
            if a.kind == 'salu' and ('x', 'm0') in a.w and b.kind == 'vm' and ('x', 'm0') in b.r:
                need, why = max(need, 1), 'm0->dma'
            if a.kind == 'salu' and ('x', 'm0') in a.w and b.mn.startswith('v_writelane') and 'm0' in b.ops:
                need, why = max(need, 1), 'm0->lane'
            if need > dist:
                errs.append(f'{why}: need {need} have {dist}: [{a.text}] -> [{b.text}] it={it}')
            dist += a.states()
            if dist >= 20:
                break
    return errs
```

```python
import math, struct, sys, argparse
from asmlib import *

NAME = 'standalone__modern_conv_block_convnext_v2__vision'


def f2u(x):
    return struct.unpack('<I', struct.pack('<f', x))[0]


def hx(x):
    return '0x%08x' % (x & 0xffffffff)


C0 = 2.0 * math.sqrt(2.0 / math.pi) * math.log2(math.e)
ALPHA = (C0 * 0.044715) ** (1.0 / 3.0)
KG = C0 / ALPHA


class Cfg:
    NS = (4, 4)
    PBASE = 0
    XNT = 'nt'
    XNT2 = 'nt'
    ONT = 'nt'
    PST = ''
    PLD = ''
    STAMP = False
    R = 8
    NSH = 16
    PREF = True
    SPIN = 1 << 20


MISC = 0xE000000
W2F_OFF = 0
SUM_OFF = 0x50000
ZERO_BYTES = 28672
CNT_OFF = SUM_OFF + 24576
STAMP_OFF = 0x60000
MISC_SIZE = 0x80000
XB = 576 * 384

L_XR = 0
L_XN = 24576
L_RHO = 49152
L_PREC = 51712
L_STAGE = 51712
LDS_BYTES = 150016

sWG, sW = 's2', 's3'
SX, SO, SP, SM, SA, SB = 's[4:7]', 's[8:11]', 's[12:15]', 's[16:19]', 's[20:23]', 's[24:27]'
pX, pDW, pW1, pW2, pG, pB, pO, pD, pWS = 32, 34, 36, 38, 40, 42, 44, 46, 48
sK = 's[50:51]'
sK0 = 's50'
sT, sT2 = 's52', 's53'
sIT = 's54'
sXo = 's55'
sPa, sPb = 's56', 's57'
sWown, sWoth, sStage = 's58', 's59', 's60'
sOo = 's61'
sXM = 's62'
sPM = 's63'
sD1, sD2 = 's64', 's65'
sXS = 's66'
sPS = 's67'
sM1, sM2 = 's[68:69]', 's[70:71]'
sPar, sHalf = 's72', 's73'
sPMw0, sPMw1 = 's74', 's75'
sPR = 's76'
sST = 's[78:79]'
sST0 = 's78'
sCS, sCX = 's80', 's81'


def v(i, n=1):
    return f'v{i}' if n == 1 else f'v[{i}:{i+n-1}]'


def a(i, n=1):
    return f'a{i}' if n == 1 else f'a[{i}:{i+n-1}]'


def reg(r, n=1, off=0):
    kind, i = r
    return (v if kind == 'v' else a)(i + off, n)


vXoff, vLin, vXrA, vXrB, vPst, vPrec, vPrecW, vOutW, vOutR, vRho = range(10)
vRv = 10
ACC = 12
Y = (60, 68, 76)
PK = 84
E = (88, 96)
G = 104
W1V = 112
XF = 144
DW = 168
RB = (192, 204)
VV = 216
LT = 240
vPoll = 248
BIAS = 12
O = (24, 36)
S2 = 48
T2 = 64
PP = 72
OC = 80
W2V = 88
A_ID, A_RING, A_OUT, A_W2 = 96, 100, 124, 136
NRING = 6


def w1reg(T, q):
    if T >= 8:
        return ('a', ((T - 8) * 6 + q) * 4)
    n = T * 6 + q
    if n < 40:
        return ('a', 96 + n * 4)
    return ('v', W1V + (n - 40) * 4)


def w2reg(kk, q):
    n = kk * 3 + q
    if n < 30:
        return ('a', A_W2 + n * 4)
    return ('v', W2V + (n - 30) * 4)


def mfma(d, A, B, C):
    return f'v_mfma_f32_16x16x32_bf16 {d}, {A}, {B}, {C}'


def srd(b, dst, ptr, nr, addlo=None):
    n = int(dst[2:dst.index(':')])
    if addlo is None:
        b.e(f's_mov_b32 s{n}, s{ptr}')
        b.e(f's_mov_b32 s{n+1}, s{ptr+1}')
    else:
        b.e(f's_add_u32 s{n}, s{ptr}, {addlo}')
        b.e(f's_addc_u32 s{n+1}, s{ptr+1}, 0')
    b.e(f's_mov_b32 s{n+2}, {nr}')
    b.e(f's_mov_b32 s{n+3}, 0x20000')


class Gen:
    def __init__(self, cfg):
        c = self.c = cfg
        self.NS = c.NS
        self.NR = (6 - c.NS[0], 6 - c.NS[1])
        self.NRM = max(self.NR)
        self.NSM = max(self.NS)
        self.PSS = 4096 * (c.NS[0] + c.NS[1])
        self.PSZ = 18 * self.PSS
        self.L_PST = L_PREC + 2 * self.NRM * 4096
        self.SLOT = self.NSM * 4096
        self.D = min(5, (LDS_BYTES - self.L_PST) // self.SLOT)
        assert self.D >= 4
        self.L_TAB = self.L_PST + (self.D - 1) * self.SLOT
        self.L_S = self.L_TAB
        self.L_BETA = self.L_TAB + 4096
        self.L_DW = self.L_TAB + 8192
        self.L_RED = self.L_TAB + 12288
        self.nstamp = 0

    def stamp(self, b):
        if not self.c.STAMP:
            return
        n = self.nstamp
        self.nstamp += 1
        b.e('s_waitcnt lgkmcnt(0)')
        b.e(f's_memrealtime {sST}')
        b.e('s_waitcnt lgkmcnt(0)')
        b.e(f'v_writelane_b32 v11, {sST0}, {n}')

    def xload(self, b, buf, tagd=None):
        out = []
        for k in range(3):
            out.append(Ins(f'buffer_load_dwordx4 {v(RB[buf]+4*k,4)}, {v(vXoff)}, {SX}, {sXo} offen offset:{128*k} {self.c.XNT}'))
        return out

    def ln_parts(self, buf, slot, rho_off):
        P = {}
        rb = RB[buf]
        P['dot'] = []
        for i in range(12):
            P['dot'].append(f'v_dot2_f32_bf16 {v(VV+2*i)}, {v(rb+i)}, {v(DW+2*i)}, 0')
            P['dot'].append(f'v_dot2_f32_bf16 {v(VV+2*i+1)}, {v(rb+i)}, {v(DW+2*i+1)}, 0')
        sp, qp = LT, LT + 2
        l = [f'v_pk_mul_f32 {v(qp,2)}, {v(VV,2)}, {v(VV,2)}',
             f'v_pk_add_f32 {v(sp,2)}, {v(VV,2)}, {v(VV+2,2)}']
        for i in range(1, 12):
            l.append(f'v_pk_fma_f32 {v(qp,2)}, {v(VV+2*i,2)}, {v(VV+2*i,2)}, {v(qp,2)}')
            if i >= 2:
                l.append(f'v_pk_add_f32 {v(sp,2)}, {v(sp,2)}, {v(VV+2*i,2)}')
        P['sum'] = l
        s, q = LT, LT + 2
        m, t = LT + 4, LT + 5
        rho, bb = LT + 6, LT + 7
        l = [f'v_add_f32 {v(s)}, {v(s)}, {v(s+1)}', f'v_add_f32 {v(q)}, {v(q)}, {v(q+1)}', 's_nop 0']
        for dp in ('quad_perm:[1,0,3,2]', 'quad_perm:[2,3,0,1]', 'row_half_mirror'):
            l.append(f'v_add_f32_dpp {v(s)}, {v(s)}, {v(s)} {dp} row_mask:0xf bank_mask:0xf')
            l.append(f'v_add_f32_dpp {v(q)}, {v(q)}, {v(q)} {dp} row_mask:0xf bank_mask:0xf')
            l.append('s_nop 0')
        l.pop()
        l += [f'v_mul_f32 {v(m)}, {hx(f2u(1/192))}, {v(s)}',
              f'v_mov_b32 {v(t)}, {hx(f2u(1e-5))}',
              f'v_fma_f32 {v(s)}, -{v(m)}, {v(m)}, {v(t)}',
              f'v_fmamk_f32 {v(q)}, {v(q)}, {hx(f2u(1/192))}, {v(s)}',
              f'v_max_f32 {v(q)}, {v(q)}, {v(t)}',
              f'v_rsq_f32 {v(q)}, {v(q)}',
              's_nop 0',
              f'v_mul_f32 {v(rho)}, {hx(f2u(-ALPHA))}, {v(q)}',
              f'v_mul_f32_e64 {v(bb)}, -{v(m)}, {v(rho)}']
        P['stat'] = l
        P['norm'] = [f'v_pk_fma_f32 {v(VV+2*i,2)}, {v(VV+2*i,2)}, {v(rho,2)}, {v(rho,2)} op_sel:[0,0,1] op_sel_hi:[1,0,1]' for i in range(12)]
        P['cvt'] = [f'v_cvt_pk_bf16_f32 {v(VV+i)}, {v(VV+2*i)}, {v(VV+2*i+1)}' for i in range(12)]
        P['wr'] = [Ins(f'ds_write_b128 {v(vOutR)}, {v(VV+4*k,4)} offset:{L_XN+slot*12288+k*2048}', ('xn', 0)) for k in range(3)]
        P['rho'] = [Ins(f'ds_write_b32 {v(vRho)}, {v(rho)} offset:{rho_off}', ('xn', 0))]
        return P

    def xfrag_read(self, q, base, dst):
        r = vXrA if q < 3 else vXrB
        return f'ds_read_b128 {dst}, {v(r)} offset:{base + (q % 3) * 2048}'

    def prologue(self):
        c = self.c
        b = Block()
        b.e(f's_cmp_ge_u32 {sWG}, 256')
        b.e('s_cbranch_scc1 L_end')
        b.e('s_load_dwordx16 s[32:47], s[0:1], 0')
        b.e('s_load_dwordx2 s[48:49], s[0:1], 64')
        L, W_, t0, t1, t2, t3 = 240, 241, 242, 243, 244, 245
        b.e(f'v_lshrrev_b32 {v(W_)}, 6, v0')
        b.e(f'v_and_b32 {v(L)}, 63, v0')
        b.e(f'v_readfirstlane_b32 {sW}, {v(W_)}')
        if c.PREF:
            b.e('s_getpc_b64 s[28:29]')
            b.e('L_pc:')
            b.e(f'v_lshlrev_b32 {v(t0)}, 7, v0')
            b.e(f'v_add_u32 {v(t1)}, 0x8000, {v(t0)}')
            b.e(f'v_min_u32 {v(t0)}, L_end-L_pc, {v(t0)}')
            b.e(f'v_min_u32 {v(t1)}, L_end-L_pc, {v(t1)}')
            b.e(f'global_load_dword {v(vPoll)}, {v(t0)}, s[28:29]')
            b.e(f'global_load_dword {v(vPoll)}, {v(t1)}, s[28:29]')
        if c.STAMP:
            b.e('v_mov_b32 v11, 0')
        b.e(f'v_lshlrev_b32 {v(vLin)}, 4, {v(L)}')
        b.e(f's_lshr_b32 {sPar}, {sW}, 1')
        b.e(f's_and_b32 {sHalf}, {sW}, 1')
        b.e(f'v_lshrrev_b32 {v(t0)}, 3, {v(L)}')
        b.e(f's_lshl_b32 {sT}, {sW}, 3')
        b.e(f'v_add_u32 {v(t1)}, {sT}, {v(t0)}')
        b.e(f'v_lshlrev_b32 {v(vRho)}, 2, {v(t1)}')
        b.e(f'v_add_u32 {v(vRho)}, {L_RHO}, {v(vRho)}')
        b.e(f'v_lshrrev_b32 {v(t2)}, 1, {v(t1)}')
        b.e(f'v_xor_b32 {v(t2)}, {v(t2)}, {v(L)}')
        b.e(f'v_and_b32 {v(t2)}, 7, {v(t2)}')
        b.e(f'v_lshlrev_b32 {v(t2)}, 4, {v(t2)}')
        b.e(f'v_mul_u32_u24 {v(t1)}, 384, {v(t1)}')
        b.e(f'v_add_u32 {v(vXoff)}, {v(t1)}, {v(t2)}')
        b.e(f's_mul_i32 {sT}, {sPar}, 6144')
        b.e(f's_lshl_b32 {sT2}, {sHalf}, 10')
        b.e(f's_add_u32 {sXM}, {sT}, {sT2}')
        b.e(f'v_add_u32 {v(vOutR)}, {sXM}, {v(vLin)}')
        b.e(f'v_and_b32 {v(t0)}, 15, {v(L)}')
        b.e(f'v_lshrrev_b32 {v(t1)}, 4, {v(L)}')
        b.e(f'v_lshrrev_b32 {v(t3)}, 1, {v(t0)}')
        b.e(f'v_xor_b32 {v(t3)}, {v(t3)}, {v(t1)}')
        b.e(f's_lshl_b32 {sT}, {sPar}, 2')
        b.e(f'v_xor_b32 {v(t3)}, {sT}, {v(t3)}')
        b.e(f'v_lshlrev_b32 {v(t3)}, 4, {v(t3)}')
        b.e(f'v_lshl_add_u32 {v(vXrA)}, {v(t0)}, 7, {v(t3)}')
        b.e(f'v_xor_b32 {v(vXrB)}, 64, {v(vXrA)}')
        b.e('s_waitcnt lgkmcnt(0)')
        self.stamp(b)
        b.e(f's_mul_i32 {sT}, {sWG}, {XB}')
        srd(b, SX, pX, XB, sT)
        srd(b, SO, pO, 0, sT)
        b.e(f's_mul_i32 {sT}, {sWG}, {self.PSZ}')
        b.e(f's_add_u32 {sT}, {sT}, {c.PBASE}')
        srd(b, SP, pWS, 0, sT)
        srd(b, SM, pWS, MISC_SIZE, MISC)
        srd(b, SA, pW1, 192 * 768 * 2)
        srd(b, SB, pDW, 384)
        b.e(f's_mov_b32 {sXo}, 0')
        b.extend(self.xload(b, 0))
        for k in range(3):
            b.e(f'buffer_load_dwordx4 {v(VV+4*k,4)}, {v(t2)}, {SB}, 0 offen offset:{128*k}')
        b.e(f's_mov_b32 {sXo}, 12288')
        b.extend(self.xload(b, 1))
        b.e(f's_mov_b32 {sXo}, 24576')
        JW = 12
        b.e(f's_lshl_b32 {sT}, {sWG}, 2')
        b.e(f's_add_u32 {sD1}, {sT}, {sW}')
        b.e(f's_mul_i32 {sT}, {sD1}, 911')
        b.e(f's_lshr_b32 {sT}, {sT}, 16')
        b.e(f's_mul_i32 {sT2}, {sT}, 72')
        b.e(f's_sub_u32 {sT2}, {sD1}, {sT2}')
        b.e(f's_mul_i32 {sD2}, {sT2}, 21846')
        b.e(f's_lshr_b32 {sD2}, {sD2}, 16')
        b.e(f's_mul_i32 {sIT}, {sD2}, 3')
        b.e(f's_sub_u32 {sT2}, {sT2}, {sIT}')
        b.e(f's_lshl_b32 {sT2}, {sT2}, 7')
        b.e(f's_lshl_b32 {sT}, {sT}, 5')
        b.e(f's_add_u32 {sT}, {sT}, {sT2}')
        b.e(f's_mul_i32 {sD2}, {sD2}, {32*384}')
        b.e(f's_add_u32 {sT}, {sT}, {sD2}')
        b.e(f's_cmp_lt_u32 {sWG}, 72')
        b.e(f's_cselect_b32 {sD2}, {768*384}, 0')
        srd(b, SB, pW2, sD2)
        b.e(f'v_mul_u32_u24 {v(JW+8)}, {4*384}, {v(t1)}')
        b.e(f'v_lshl_add_u32 {v(JW+8)}, {v(t0)}, 1, {v(JW+8)}')
        b.e(f'v_add_u32 {v(JW+9)}, {16*384}, {v(JW+8)}')
        for t in range(8):
            b.e(f'buffer_load_ushort {v(JW+t)}, {v(JW+8+(t>>2))}, {SB}, {sT} offen offset:{384*(t&3)}')
        TA = 24
        b.e(f's_mul_i32 {sT}, {sW}, 24576')
        b.e(f's_add_u32 {sStage}, {sT}, {L_STAGE}')
        b.e(f's_mul_i32 {sT}, {sW}, 384')
        b.e(f's_mul_i32 {sT2}, {sPar}, 49152')
        b.e(f's_add_u32 {sWown}, {sT}, {sT2}')
        b.e(f's_sub_u32 {sT2}, 49152, {sT2}')
        b.e(f's_add_u32 {sWoth}, {sT}, {sT2}')
        u0, u1, u2 = 29, 30, 31
        b.e(f'v_lshrrev_b32 {v(u0)}, 3, {v(L)}')
        b.e(f'v_lshrrev_b32 {v(u1)}, 5, {v(L)}')
        b.e(f'v_lshlrev_b32 {v(u1)}, 2, {v(u1)}')
        b.e(f'v_add_u32 {v(u1)}, {v(u1)}, {v(u0)}')
        b.e(f'v_mul_u32_u24 {v(u1)}, 1536, {v(u1)}')
        b.e(f'v_lshrrev_b32 {v(u2)}, 4, {v(L)}')
        b.e(f'v_lshlrev_b32 {v(u2)}, 1, {v(u2)}')
        b.e(f'v_xor_b32 {v(u2)}, {v(u2)}, {v(L)}')
        b.e(f'v_and_b32 {v(u2)}, 7, {v(u2)}')
        b.e(f'v_lshl_add_u32 {v(TA+4)}, {v(u2)}, 4, {v(u1)}')
        b.e(f'v_lshrrev_b32 {v(u0)}, 2, {v(L)}')
        b.e(f'v_and_b32 {v(u0)}, 7, {v(u0)}')
        b.e(f'v_lshrrev_b32 {v(u1)}, 5, {v(L)}')
        b.e(f'v_lshlrev_b32 {v(u1)}, 11, {v(u1)}')
        b.e(f'v_lshl_add_u32 {v(u1)}, {v(u0)}, 7, {v(u1)}')
        b.e(f'v_and_b32 {v(u2)}, 3, {v(L)}')
        b.e(f'v_lshl_add_u32 {v(u1)}, {v(u2)}, 3, {v(u1)}')
        b.e(f'v_add_u32 {v(u1)}, {sStage}, {v(u1)}')
        b.e(f'v_lshrrev_b32 {v(u0)}, 1, {v(u0)}')
        for t4 in range(4):
            b.e(f'v_xor_b32 {v(u2)}, {t4}, {v(u0)}')
            b.e(f'v_lshl_add_u32 {v(TA+t4)}, {v(u2)}, 5, {v(u1)}')
        units = [(Q, q) for Q in range(3) for q in range(6)]

        def dma_unit(n):
            Q, q = units[n]
            for h in range(2):
                for s in range(2):
                    b.e(f's_add_u32 {sT}, {sWown if q < 3 else sWoth}, {(64*(q%3)+16*h+4*s)*1536+128*Q}')
                    b.e(f's_add_u32 m0, {sStage}, {(n%6)*4096+(2*h+s)*1024}')
                    b.e('s_nop 0')
                    b.e(f'buffer_load_dwordx4 {v(TA+4)}, {SA}, {sT} offen lds', ('w1', n))
        for n in range(6):
            dma_unit(n)
        b.wait(regs=[v(VV, 12), v(RB[0], 12)])
        for i in range(12):
            b.e(f'v_and_b32 {v(DW+2*i)}, 0xffff, {v(VV+i)}')
            b.e(f'v_and_b32 {v(DW+2*i+1)}, 0xffff0000, {v(VV+i)}')
        P = self.ln_parts(0, 0, 0)
        b.extend(P['dot'])
        b.extend(self.xload(b, 0))
        b.e(f's_add_u32 {sXo}, {sXo}, 12288')
        for k in ('sum', 'stat', 'norm', 'cvt', 'wr', 'rho'):
            b.extend(P[k])
        b.wait(regs=[v(JW, 8)])
        for d in range(4):
            b.e(f'v_lshl_or_b32 {v(JW+d)}, {v(JW+2*d+1)}, 16, {v(JW+2*d)}')
        b.e(f's_lshl_b32 {sT}, {sD1}, 10')
        b.e(f's_cmp_lt_u32 {sWG}, 72')
        b.e(f's_cselect_b32 s26, {W2F_OFF+288*1024}, 0')
        b.e('s_mov_b32 s24, s16')
        b.e('s_mov_b32 s25, s17')
        b.e(f'buffer_store_dwordx4 {v(JW,4)}, {v(vLin)}, {SB}, {sT} offen sc1', ('job', 0))
        for d in range(4):
            b.e(f'v_mov_b32 {v(JW+4+d)}, 0')
        b.e(f's_cmp_eq_u32 {sWG}, 255')
        b.e(f's_cselect_b32 s26, {SUM_OFF+ZERO_BYTES}, 0')
        b.e(f's_mul_i32 {sT}, {sW}, 7168')
        b.e(f's_add_u32 {sT}, {sT}, {SUM_OFF}')
        for k in range(7):
            if k == 4:
                b.e(f's_add_u32 {sT}, {sT}, 4096')
            b.e(f'buffer_store_dwordx4 {v(JW+4,4)}, {v(vLin)}, {SB}, {sT} offen offset:{(k%4)*1024} sc1', ('job', 0))
        for n in range(18):
            Q, q = units[n]
            b.wait(tags=[('w1', n)])
            for t4 in range(4):
                r = w1reg(4 * Q + t4, q)
                for s in range(2):
                    b.e(f'ds_read_b64_tr_b16 {reg(r,2,2*s)}, {v(TA+t4)} offset:{(n%6)*4096+s*1024}', ('tr', n))
            if n >= 1 and n + 5 < 18:
                b.wait(tags=[('tr', n - 1)])
                dma_unit(n + 5)
        b.wait(tags=[('job', 0)])
        b.e(f's_cmp_lt_u32 {sWG}, 72')
        b.e(f's_cselect_b32 {sT}, 4, 0')
        b.e(f's_cmp_eq_u32 {sWG}, 255')
        b.e(f's_cselect_b32 {sT}, 4, {sT}')
        srd(b, SB, pD, sT)
        b.e(f'v_mov_b32 {v(JW)}, 1')
        b.e(f'buffer_atomic_add {v(JW)}, {v(vLin)}, {SB}, 0 offen')
        b.e('s_mov_b32 s26, 256')
        for i in range(48):
            b.e(f'v_mov_b32 {v(ACC+i)}, 0')
        for i in range(24):
            b.e(f'v_mov_b32 {v(Y[0]+i)}, 0')
        for i in range(16):
            b.e(f'v_mov_b32 {v(E[0]+i)}, 1.0')
        for i in range(8):
            b.e(f'v_mov_b32 {v(G+i)}, 0')
        b.e(f's_mov_b32 s50, {hx(f2u(KG))}')
        b.e(f's_mov_b32 s51, {hx(f2u(KG))}')
        b.e(f's_mul_i32 {sPa}, {sW}, {self.NS[0]*1024}')
        b.e(f's_mul_i32 {sPb}, {sW}, {self.NS[1]*1024}')
        b.e(f's_add_u32 {sPb}, {sPb}, {self.NS[0]*4096}')
        b.e(f's_sub_u32 {sPb}, {sPb}, {self.PSS}')
        b.e(f'v_mov_b32 {v(LT)}, 0')
        b.e('s_waitcnt lgkmcnt(0)')
        b.e('s_barrier')
        for q in range(6):
            b.e(self.xfrag_read(q, L_XN, v(XF + 4 * q, 4)))
        b.e(f's_mov_b32 {sIT}, 9')
        b.e('s_waitcnt lgkmcnt(0)')
        self.stamp(b)
        return b

    def p1_unit(self, b, u, mf, mem, kextra, mextra):
        U = u % 6
        y0, y2 = Y[u % 3], Y[(u + 1) % 3]
        ea, eb = E[u % 2], E[(u + 1) % 2]
        have = mf if isinstance(mf, dict) else dict(m=True, exp=True, rcp=True, cvt=True, g=True, d=True, p=True)
        tr = []
        for i in range(8):
            if have['exp']:
                tr.append(f'v_exp_f32 {v(ea+i)}, {v(ea+i)}')
            if have['rcp']:
                tr.append(f'v_rcp_f32 {v(eb+i)}, {v(eb+i)}')
        Us = (u - 3) % 6
        par = ((u - 3) // 6) % 2
        pl = []
        mem = {k: list(x) for k, x in mem.items()}
        if have['cvt'] and Us < self.NS[par]:
            pl = [f'v_cvt_pk_bf16_f32 {v(PK+i)}, {v(G+2*i)}, {v(G+2*i+1)}' for i in range(4)]
            st = [f's_add_u32 {sT}, {sPb if par else sPa}, {Us*1024}',
                  f'buffer_store_dwordx4 {v(PK,4)}, {v(vLin)}, {SP}, {sT} offen {self.c.PST}']
            assert 4 not in mem
            mem[4] = st
        pl = pl + list(mextra)
        if have['m']:
            ti = 0
            for t in range(2):
                for q in range(6):
                    i = t * 6 + q
                    d = v(y0 + 4 * t, 4)
                    b.e(mfma(d, reg(w1reg(2 * U + t, q), 4), v(XF + 4 * q, 4), '0' if q == 0 else d))
                    b.extend(mem.get(i, []))
                    if i < 4 and pl and pl[0].startswith('v_cvt_pk') if isinstance(pl[0] if pl else '', str) else False:
                        b.e(pl.pop(0))
                    elif i >= 4 and pl:
                        n = -(-len(pl) // (11 - i)) if i < 11 else len(pl)
                        b.extend(pl[:n]); pl = pl[n:]
                    b.e(tr[ti]); ti += 1
            b.extend(tr[ti:])
        else:
            b.extend(pl)
            b.extend(mem.get(4, []))
            b.extend(tr)
            b.e('s_nop 0')
        Ug = (u - 2) % 6
        if have['g']:
            for i in range(0, 8, 2):
                b.e(f'v_pk_mul_f32 {v(G+i,2)}, {v(y2+i,2)}, {v(eb+i,2)}')
        if have['d']:
            for i in range(0, 8, 2):
                b.e(f'v_pk_add_f32 {v(ea+i,2)}, {v(ea+i,2)}, 1.0 op_sel_hi:[1,0]')
        if have['g']:
            for i in range(0, 8, 2):
                b.e(f'v_pk_fma_f32 {v(ACC+8*Ug+i,2)}, {v(G+i,2)}, {v(G+i,2)}, {v(ACC+8*Ug+i,2)}')
        b.extend(kextra)
        if have['p']:
            for i in range(0, 8, 2):
                b.e(f'v_pk_fma_f32 {v(eb+i,2)}, {v(y0+i,2)}, {v(y0+i,2)}, {sK}')
            for i in range(0, 8, 2):
                b.e(f'v_pk_mul_f32 {v(eb+i,2)}, {v(eb+i,2)}, {v(y0+i,2)}')

    def p1_body(self):
        b = Block()
        b.e('.p2align 6')
        b.e('L_p1:')
        for sg in range(2):
            nb = (sg + 1) % 2
            P = self.ln_parts(nb, nb, 128 * (sg + 1))
            for uu in range(12):
                u = sg * 12 + uu
                mem, kx, mx = {}, [], []
                if uu == 0:
                    mem[11] = [mkwait(regs=[v(RB[nb], 12)])]
                    mem[0] = [mkwait(regs=[v(XF + 4, 4)])]
                    for q in range(2, 6):
                        mem[q - 1] = [mkwait(regs=[v(XF + 4 * q, 4)])] if q != 5 else []
                    kx = P['dot']
                if uu == 6:
                    mem[0] = [mkwait(regs=[v(XF + 4, 4)])]
                    for q in range(2, 5):
                        mem[q - 1] = [mkwait(regs=[v(XF + 4 * q, 4)])]
                if uu in (0, 6):
                    mem[3] = [mkwait(regs=[v(XF + 16, 8)])]
                    mem.pop(4, None)
                if uu == 1:
                    ld = self.xload(b, nb)
                    mem[6] = [ld[0]]
                    mem[8] = [ld[1]]
                    mem[10] = [ld[2]]
                    mem[11] = [f's_add_u32 {sXo}, {sXo}, 12288']
                    kx = P['sum']
                if uu == 2:
                    mx = P['stat']
                    kx = P['norm']
                    mem[6] = [f's_add_u32 {sPb}, {sPb}, {self.PSS}']
                    mem[7] = [f's_mov_b32 s14, {self.PSZ}']
                if uu == 3:
                    mx = P['cvt']
                if uu == 4:
                    mem[0] = [P['wr'][0]]
                    mem[2] = [P['wr'][1]]
                    mem[6] = [P['wr'][2]]
                    mem[8] = [P['rho'][0]]
                    if sg == 0:
                        mem[10] = [f'buffer_load_dword {v(vPoll)}, {v(vLin)}, {SB}, 0 offen sc1']
                if uu == 8:
                    mem[6] = [f's_add_u32 {sPa}, {sPa}, {self.PSS}']
                if uu == 9:
                    mem[0] = [mkwait(tags=[('xn', 0)])]
                    mem[1] = ['s_barrier']
                if uu in (5, 11):
                    base = L_XN + (sg * 12288 + 6144 if uu == 5 else nb * 12288)
                    for q in range(6):
                        mem[6 + q] = [self.xfrag_read(q, base, v(XF + 4 * q, 4))]
                    kx = kx + [mkwait(regs=[v(XF, 4)])]
                if u == 23:
                    mem[0] = [f's_sub_u32 {sIT}, {sIT}, 1']
                    mx = [f'v_add_u32 {v(vRho)}, 256, {v(vRho)}']
                self.p1_unit(b, u, True, mem, kx, mx)
        b.e(f's_cmp_lg_u32 {sIT}, 0')
        b.e('s_cbranch_scc1 L_p1')
        return b

    def p_dma(self, par, slot_sgpr, og):
        out = []
        ns = self.NS[par]
        sp = sPb if par else sPa
        spm = sPMw1 if par else sPMw0
        for U in range(ns):
            g = []
            if U == 0:
                g.append(f's_add_u32 m0, {slot_sgpr}, {spm}')
                so = sp
            if U == 4:
                g.append(f's_add_u32 m0, m0, 4096')
                g.append(f's_add_u32 {sT}, {sp}, 4096')
                so = sT
            g.append(Ins(f'buffer_load_dwordx4 {v(vLin)}, {SP}, {so} offen offset:{(U%4)*1024} {self.c.PLD} lds', ('p', og)))
            out.append(g)
        return out

    def x_dma(self, og):
        out = []
        for k in range(3):
            g = [f's_add_u32 m0, {sXM}, {k*1920}',
                 Ins(f'buffer_load_dwordx4 {v(vXoff)}, {SX}, {sXo} offen offset:{128*k} {self.c.XNT2} lds', ('x', og))]
            out.append(g)
        return out

    def flat(self, b, groups):
        for g in groups:
            for k, x in enumerate(g):
                if isinstance(x, Ins) and k > 0:
                    b.e('s_nop 0')
                b.extend([x])

    def handoff(self):
        c = self.c
        b = Block()
        self.stamp(b)
        b.e('s_waitcnt lgkmcnt(0)')
        z = dict(m=False, exp=False, rcp=False, cvt=False, g=False, d=False, p=False)
        self.p1_unit(b, 24, dict(z, exp=True, rcp=True, cvt=True, g=True, d=True), {}, [], [])
        self.p1_unit(b, 25, dict(z, rcp=True, cvt=True, g=True), {}, [], [])
        self.p1_unit(b, 26, dict(z, cvt=True), {}, [], [])
        for i in range(24):
            b.e(f'v_add_f32_dpp {v(ACC+i)}, {v(ACC+i)}, {v(ACC+i)} row_ror:8 row_mask:0xf bank_mask:0xf')
        for i in range(24):
            b.e(f'v_add_f32_dpp {v(ACC+i)}, {v(ACC+24+i)}, {v(ACC+24+i)} row_ror:8 row_mask:0xf bank_mask:0xc')
        for i in range(12):
            b.e(f'v_add_f32_dpp {v(ACC+i)}, {v(ACC+i)}, {v(ACC+i)} row_half_mirror row_mask:0xf bank_mask:0xf')
        for i in range(12):
            b.e(f'v_add_f32_dpp {v(ACC+i)}, {v(ACC+12+i)}, {v(ACC+12+i)} row_half_mirror row_mask:0xf bank_mask:0xa')
        for dp in ('quad_perm:[1,0,3,2]', 'quad_perm:[2,3,0,1]'):
            for i in range(12):
                b.e(f'v_add_f32_dpp {v(ACC+i)}, {v(ACC+i)}, {v(ACC+i)} {dp} row_mask:0xf bank_mask:0xf')
        b.e('s_mov_b32 s68, 0xaaaaaaaa')
        b.e('s_mov_b32 s69, 0xaaaaaaaa')
        b.e('s_mov_b32 s70, 0xcccccccc')
        b.e('s_mov_b32 s71, 0xcccccccc')
        for r in range(3):
            A = ACC + 4 * r
            b.e(f'v_cndmask_b32 {v(A)}, {v(A)}, {v(A+1)}, {sM1}')
            b.e(f'v_cndmask_b32 {v(A+2)}, {v(A+2)}, {v(A+3)}, {sM1}')
            b.e(f'v_cndmask_b32 {v(A)}, {v(A)}, {v(A+2)}, {sM2}')
        L4 = 80
        b.e(f'v_lshrrev_b32 {v(L4)}, 2, {v(vLin)}')
        b.wait(regs=[v(vPoll)])
        b.e(f's_mov_b32 {sIT}, {c.SPIN}')
        b.e(f'v_readfirstlane_b32 {sT}, {v(vPoll)}')
        b.e('L_init:')
        b.e(f's_cmp_ge_u32 {sT}, 292')
        b.e('s_cbranch_scc1 L_init_ok')
        b.e(f'buffer_load_dword {v(vPoll)}, {v(vLin)}, {SB}, 0 offen sc1')
        b.e('s_waitcnt vmcnt(0)')
        b.e(f'v_readfirstlane_b32 {sT}, {v(vPoll)}')
        b.e(f's_sub_u32 {sIT}, {sIT}, 1')
        b.e(f's_cmp_lg_u32 {sIT}, 0')
        b.e('s_cbranch_scc1 L_init')
        b.e('L_init_ok:')
        b.e(f's_and_b32 {sT}, {sWG}, {c.R-1}')
        b.e(f's_mul_i32 {sT}, {sT}, 3072')
        b.e(f's_mul_i32 {sD1}, {sW}, 768')
        b.e(f's_add_u32 {sD1}, {sD1}, {SUM_OFF}')
        b.e(f's_add_u32 {sT}, {sT}, {sD1}')
        for r in range(3):
            b.e(f'buffer_atomic_add_f32 {v(ACC+4*r)}, {v(L4)}, {SM}, {sT} offen offset:{256*r}', ('at', 0))
        TID16 = 81
        b.e(f's_lshl_b32 {sT2}, {sW}, 10')
        b.e(f'v_add_u32 {v(TID16)}, {sT2}, {v(vLin)}')
        srd(b, SA, pB, 1536)
        b.e(f's_add_u32 m0, {sT2}, {self.L_BETA}')
        b.e('s_nop 0')
        b.e(f'buffer_load_dwordx4 {v(TID16)}, {SA}, 0 offen lds', ('tab', 0))
        srd(b, SA, pDW, 384)
        b.e(f's_add_u32 m0, {sT2}, {self.L_DW}')
        b.e('s_nop 0')
        b.e(f'buffer_load_dwordx4 {v(TID16)}, {SA}, 0 offen lds', ('tab', 0))
        GA, GV, SADL = 62, 68, (71, 86, 87)
        t0, t1, t2 = 72, 73, 74
        b.e(f'v_lshrrev_b32 {v(t0)}, 4, {v(vLin)}')
        b.e(f'v_bfe_u32 {v(t1)}, {v(t0)}, 2, 1')
        b.e(f'v_bfe_u32 {v(t2)}, {v(t0)}, 3, 1')
        b.e(f'v_lshl_add_u32 {v(t1)}, {v(t2)}, 1, {v(t1)}')
        b.e(f'v_mul_u32_u24 {v(t1)}, 3, {v(t1)}')
        b.e(f'v_lshrrev_b32 {v(t2)}, 4, {v(t0)}')
        b.e(f'v_and_b32 {v(t0)}, 3, {v(t0)}')
        b.e(f'v_lshl_add_u32 {v(GA)}, {v(t2)}, 2, {v(t0)}')
        b.e(f'v_lshl_add_u32 {v(GA)}, {v(t1)}, 4, {v(GA)}')
        b.e(f'v_lshlrev_b32 {v(GA)}, 1, {v(GA)}')
        srd(b, SA, pG, 1536)
        b.e(f's_mul_i32 {sT}, {sW}, 384')
        for r in range(3):
            b.e(f'buffer_load_ushort {v(GV+r)}, {v(GA)}, {SA}, {sT} offen offset:{32*r}')
        b.e(f'v_lshlrev_b32 {v(t2)}, 5, {v(t2)}')
        b.e(f'v_lshl_add_u32 {v(t2)}, {v(t0)}, 2, {v(t2)}')
        b.e(f's_mul_i32 {sT}, {sW}, 768')
        b.e(f's_add_u32 {sT}, {sT}, {self.L_S}')
        b.e(f'v_add_u32 {v(t2)}, {sT}, {v(t2)}')
        for r in range(3):
            b.e(f'v_add_u32 {v(t0)}, {r}, {v(t1)}')
            b.e(f'v_lshrrev_b32 {v(SADL[r])}, 1, {v(t0)}')
            b.e(f'v_lshl_add_u32 {v(SADL[r])}, {v(SADL[r])}, 7, {v(t2)}')
            b.e(f'v_and_b32 {v(t0)}, 1, {v(t0)}')
            b.e(f'v_lshl_add_u32 {v(SADL[r])}, {v(t0)}, 4, {v(SADL[r])}')
        b.e(f's_mov_b32 {sXo}, 0')
        for n in range(2):
            self.flat(b, self.x_dma(n))
            b.e(f's_add_u32 {sXo}, {sXo}, 12288')
            b.e(f's_add_u32 {sXM}, {sXM}, 12288')
        b.e(f's_mul_i32 {sPa}, {sW}, {self.NS[0]*1024}')
        b.e(f's_mul_i32 {sPb}, {sW}, {self.NS[1]*1024}')
        b.e(f's_mov_b32 {sPMw0}, {sPa}')
        b.e(f's_mov_b32 {sPMw1}, {sPb}')
        b.e(f's_add_u32 {sPb}, {sPb}, {self.NS[0]*4096}')
        b.e(f's_mov_b32 {sPM}, {self.L_PST}')
        for j in range(self.D - 1):
            self.flat(b, self.p_dma(j & 1, sPM, j))
            b.e(f's_add_u32 {sPb if j&1 else sPa}, {sPb if j&1 else sPa}, {self.PSS}')
            b.e(f's_add_u32 {sPM}, {sPM}, {self.SLOT}')
        b.e(f's_mul_i32 {sD1}, {sW}, {72*1024}')
        order = [n for n in range(72) if n < 30 or W2V + (n - 30) * 4 >= W1V] + [n for n in range(30, 72) if W2V + (n - 30) * 4 < W1V]

        def w2load(n):
            if True:
                b.e(f's_add_u32 {sT}, {sD1}, {W2F_OFF + n*1024}')
            b.e(f'buffer_load_dwordx4 {reg(w2reg(n//3, n%3),4)}, {v(vLin)}, {SM}, {sT} offen sc1')
        first = 30
        for n in order[:first]:
            w2load(n)
        b.wait(tags=[('at', 0)])
        b.e('s_barrier')
        b.e(f's_and_b32 {sT}, {sWG}, {c.NSH-1}')
        b.e(f's_lshl_b32 {sT}, {sT}, 7')
        b.e(f's_add_u32 {sT}, {sT}, {CNT_OFF}')
        b.e(f's_add_u32 s20, s16, {sT}')
        b.e(f's_addc_u32 s21, s17, 0')
        b.e(f's_cmp_eq_u32 {sW}, 0')
        b.e(f's_cselect_b32 s22, 4, 0')
        b.e(f'v_mov_b32 {v(t0)}, 1')
        b.e(f'buffer_atomic_add {v(t0)}, {v(vLin)}, {SA}, 0 offen')
        self.stamp(b)
        for n in order[first:]:
            w2load(n)
        b.e(f'v_add_u32 {v(vPst)}, {self.L_PST}, {v(vLin)}')
        b.e(f'v_add_u32 {v(vPrec)}, {L_PREC}, {v(vLin)}')
        b.e(f's_mul_i32 {sT}, {sW}, {self.NRM*1024}')
        b.e(f'v_add_u32 {v(vPrecW)}, {sT}, {v(vPrec)}')
        t3 = 75
        b.e(f'v_lshrrev_b32 {v(t0)}, 4, {v(vLin)}')
        b.e(f'v_and_b32 {v(t1)}, 15, {v(t0)}')
        b.e(f'v_lshrrev_b32 {v(t2)}, 4, {v(t0)}')
        b.e(f'v_lshlrev_b32 {v(vRho)}, 2, {v(t1)}')
        b.e(f'v_add_u32 {v(vRho)}, {L_RHO}, {v(vRho)}')
        b.e(f's_lshl_b32 {sT}, {sW}, 1')
        b.e(f'v_lshrrev_b32 {v(t3)}, 1, {v(t2)}')
        b.e(f'v_add_u32 {v(t3)}, {sT}, {v(t3)}')
        b.e(f'v_lshrrev_b32 {v(vOutW)}, 1, {v(t1)}')
        b.e(f'v_xor_b32 {v(t3)}, {v(t3)}, {v(vOutW)}')
        b.e(f'v_lshlrev_b32 {v(t3)}, 4, {v(t3)}')
        b.e(f'v_lshl_add_u32 {v(t3)}, {v(t1)}, 7, {v(t3)}')
        b.e(f'v_and_b32 {v(vOutW)}, 1, {v(t2)}')
        b.e(f'v_lshl_add_u32 {v(vOutW)}, {v(vOutW)}, 3, {v(t3)}')
        b.e(f's_lshl_b32 {sT}, {sHalf}, 4')
        b.e(f'v_add_u32 {v(t3)}, {sT}, {v(t1)}')
        b.e(f'v_lshlrev_b32 {v(76)}, 3, {v(t2)}')
        b.e(f'v_sub_u32 {v(t3)}, {v(t3)}, {v(76)}')
        b.e(f'v_mov_b32 {v(77)}, 0x3f80')
        b.e(f'v_mov_b32 {v(78)}, 0x3f800000')
        for d in range(4):
            b.e(f'v_cmp_eq_u32 vcc, {2*d}, {v(t3)}')
            b.e(f'v_cmp_eq_u32 {sM1}, {2*d+1}, {v(t3)}')
            b.e('s_nop 1')
            b.e(f'v_cndmask_b32 {v(76)}, 0, {v(77)}, vcc')
            b.e(f'v_cndmask_b32 {v(76)}, {v(76)}, {v(78)}, {sM1}')
            b.e(f'v_accvgpr_write_b32 {a(A_ID+d)}, {v(76)}')
        BG = 83
        b.e(f'v_lshlrev_b32 {v(BG)}, 3, {v(t2)}')
        b.e(f'v_add_u32 {v(BG)}, {self.L_BETA}, {v(BG)}')
        DA = 84
        b.e(f's_lshl_b32 {sT}, {sPar}, 6')
        b.e(f's_add_u32 {sT}, {sT}, {self.L_DW}')
        b.e(f'v_lshl_add_u32 {v(DA)}, {v(t2)}, 4, {sT}')
        b.e(f'v_xor_b32 {v(DA+1)}, 64, {v(DA)}')
        SR = 82
        b.e(f'v_lshlrev_b32 {v(SR)}, 5, {v(t2)}')
        b.e(f'v_add_u32 {v(SR)}, {self.L_S}, {v(SR)}')
        b.wait(tags=[('tab', 0), ('x', 0)])
        b.e('s_barrier')
        rect = list(range(12 - 2 * self.NRM, 12))
        if rect:
            ONE, CS = 24, 28
            for d in range(4):
                b.e(f'v_mov_b32 {v(ONE+d)}, 0x3f803f80')
            b.e('s_nop 1')
            for k, T in enumerate(rect):
                for q in range(6):
                    d = v(CS + 4 * k, 4)
                    b.e(mfma(d, v(ONE, 4), reg(w1reg(T, q), 4), '0' if q == 0 else d))
            b.e('s_nop 7')
            for k, T in enumerate(rect):
                b.e(f'v_mul_f32 {v(CS+4*k)}, {hx(f2u(-1/192))}, {v(CS+4*k)}')
            for q in range(6):
                b.e(f'ds_read_b128 {v(52,4)}, {v(DA + (q>=3))} offset:{(q%3)*128}')
                b.e('s_waitcnt lgkmcnt(0)')
                for d in range(4):
                    b.e(f'v_lshlrev_b32 {v(44+2*d)}, 16, {v(52+d)}')
                    b.e(f'v_and_b32 {v(45+2*d)}, 0xffff0000, {v(52+d)}')
                for k, T in enumerate(rect):
                    r = w1reg(T, q)
                    for d in range(4):
                        b.e(f'v_accvgpr_read_b32 {v(56+d)}, {reg(r,1,d)}')
                    for d in range(4):
                        tt = 52 + 2 * (d & 1)
                        b.e(f'v_lshlrev_b32 {v(tt)}, 16, {v(56+d)}')
                        b.e(f'v_and_b32 {v(tt+1)}, 0xffff0000, {v(56+d)}')
                        b.e(f'v_pk_add_f32 {v(tt,2)}, {v(tt,2)}, {v(CS+4*k,2)} op_sel_hi:[1,0]')
                        b.e(f'v_pk_mul_f32 {v(tt,2)}, {v(tt,2)}, {v(44+2*d,2)}')
                        b.e(f'v_cvt_pk_bf16_f32 {v(56+d)}, {v(tt)}, {v(tt+1)}')
                    for d in range(4):
                        b.e(f'v_accvgpr_write_b32 {reg(r,1,d)}, {v(56+d)}')
        for kk in range(24):
            if kk % 6 == 0:
                for k in range(kk, kk + 6):
                    b.e(f'ds_read2_b64 {a(A_RING+4*(k%6),4)}, {v(BG)} offset0:{8*k} offset1:{8*k+4}')
            for q in range(3):
                if q == 0:
                    b.wait(regs=[a(A_RING + 4 * (kk % 6), 4)] + [reg(w2reg(kk, x), 4) for x in range(3)])
                d = v(BIAS + 4 * q, 4)
                b.e(mfma(d, reg(w2reg(kk, q), 4), a(A_RING + 4 * (kk % 6), 4), '0' if kk == 0 else d))
        b.e('s_nop 7')
        self.p2_step(b, -1, only_b=True)
        self.stamp(b)
        b.e(f's_cmp_lg_u32 {sW}, 0')
        b.e('s_cbranch_scc1 L_arr_ok')
        b.e(f's_add_u32 s20, s16, {CNT_OFF}')
        b.e(f's_addc_u32 s21, s17, 0')
        b.e(f's_mov_b32 s22, {c.NSH*128}')
        b.e(f'v_lshlrev_b32 {v(t0)}, 3, {v(vLin)}')
        b.e(f'v_mov_b32 {v(t2)}, {256//c.NSH}')
        b.e(f's_mov_b32 {sIT}, {c.SPIN}')
        b.e('L_arr:')
        b.e(f'buffer_load_dword {v(t1)}, {v(t0)}, {SA}, 0 offen sc1')
        b.e('s_waitcnt vmcnt(0)')
        b.e(f'v_cmp_ge_u32 vcc, {v(t1)}, {v(t2)}')
        b.e(f's_sub_u32 {sIT}, {sIT}, 1')
        b.e('s_nop 3')
        b.e(f's_cmp_eq_u32 vcc_lo, {hx((1 << c.NSH) - 1)}')
        b.e('s_cbranch_scc1 L_arr_ok')
        b.e(f's_cmp_lg_u32 {sIT}, 0')
        b.e('s_cbranch_scc1 L_arr')
        b.e('L_arr_ok:')
        b.e('s_barrier')
        self.stamp(b)
        SU = 36
        assert SU + 3 * c.R <= 64
        b.e(f's_mul_i32 {sD1}, {sW}, 768')
        b.e(f's_add_u32 {sD1}, {sD1}, {SUM_OFF}')
        for k in range(c.R):
            b.e(f's_add_u32 {sT}, {sD1}, {k*3072}')
            for r in range(3):
                b.e(f'buffer_load_dword {v(SU+3*k+r)}, {v(L4)}, {SM}, {sT} offen offset:{256*r} sc1')
        b.e('s_waitcnt vmcnt(0)')
        for k in range(1, c.R):
            for r in range(3):
                b.e(f'v_add_f32 {v(SU+r)}, {v(SU+r)}, {v(SU+3*k+r)}')
        b.e(f'v_mov_b32 {v(t0)}, {hx(f2u(1e-6))}')
        for r in range(3):
            b.e(f'v_fmamk_f32 {v(SU+r)}, {v(SU+r)}, {hx(f2u(1/(ALPHA*ALPHA)))}, {v(t0)}')
        for r in range(3):
            b.e(f'v_sqrt_f32 {v(SU+r)}, {v(SU+r)}')
        for r in range(3):
            b.e(f'v_lshlrev_b32 {v(GV+r)}, 16, {v(GV+r)}')
        b.e(f'v_add_f32 {v(t1)}, {v(SU)}, {v(SU+1)}')
        b.e(f'v_add_f32 {v(t1)}, {v(t1)}, {v(SU+2)}')
        for dp in ('quad_perm:[1,0,3,2]', 'quad_perm:[2,3,0,1]', 'row_half_mirror', 'row_mirror'):
            b.e('s_nop 1')
            b.e(f'v_add_f32_dpp {v(t1)}, {v(t1)}, {v(t1)} {dp} row_mask:0xf bank_mask:0xf')
        b.e(f'v_lshrrev_b32 {v(t2)}, 8, {v(TID16)}')
        b.e(f'v_lshlrev_b32 {v(t2)}, 2, {v(t2)}')
        b.e(f'v_add_u32 {v(t2)}, {self.L_RED}, {v(t2)}')
        b.e(f'ds_write_b32 {v(t2)}, {v(t1)}')
        b.e(f'v_and_b32 {v(t2)}, 60, {v(L4)}')
        b.e(f'v_add_u32 {v(t2)}, {self.L_RED}, {v(t2)}')
        b.e('s_waitcnt lgkmcnt(0)')
        b.e('s_barrier')
        b.e(f'ds_read_b32 {v(t1)}, {v(t2)}')
        b.e('s_waitcnt lgkmcnt(0)')
        for dp in ('quad_perm:[1,0,3,2]', 'quad_perm:[2,3,0,1]', 'row_half_mirror', 'row_mirror'):
            b.e(f'v_add_f32_dpp {v(t1)}, {v(t1)}, {v(t1)} {dp} row_mask:0xf bank_mask:0xf')
            b.e('s_nop 1')
        b.e(f'v_fmamk_f32 {v(t1)}, {v(t1)}, {hx(f2u(1/768))}, {v(t0)}')
        b.e(f'v_rcp_f32 {v(t1)}, {v(t1)}')
        b.e(f'v_mov_b32 {v(t0)}, {hx(f2u(-1/ALPHA))}')
        for r in range(3):
            b.e(f'v_mul_f32 {v(SU+r)}, {v(SU+r)}, {v(t1)}')
        for r in range(3):
            b.e(f'v_mul_f32 {v(SU+r)}, {v(SU+r)}, {v(GV+r)}')
        for r in range(3):
            b.e(f'v_fma_f32 {v(SU+r)}, {v(SU+r)}, {v(t0)}, {v(t0)}')
        for r in range(3):
            b.e(f'ds_write_b32 {v(SADL[r])}, {v(SU+r)}')
        b.e('s_waitcnt lgkmcnt(0)')
        b.e('s_barrier')
        SB2 = (40, 48)
        b.e(f'ds_read_b128 {v(SB2[0],4)}, {v(SR)}')
        b.e(f'ds_read_b128 {v(SB2[0]+4,4)}, {v(SR)} offset:16')
        for kk in range(24):
            sb = SB2[kk & 1]
            if kk + 1 < 24:
                nb = SB2[(kk + 1) & 1]
                b.e(f'ds_read_b128 {v(nb,4)}, {v(SR)} offset:{128*(kk+1)}')
                b.e(f'ds_read_b128 {v(nb+4,4)}, {v(SR)} offset:{128*(kk+1)+16}')
            b.wait(regs=[v(sb, 8)])
            for q in range(3):
                r = w2reg(kk, q)
                src = r
                if r[0] == 'a':
                    src = ('v', 56)
                    for d in range(4):
                        b.e(f'v_accvgpr_read_b32 {v(56+d)}, {reg(r,1,d)}')
                for d in range(4):
                    b.e(f'v_lshlrev_b32 {v(64+2*d)}, 16, {reg(src,1,d)}')
                    b.e(f'v_and_b32 {v(65+2*d)}, 0xffff0000, {reg(src,1,d)}')
                for d in range(4):
                    b.e(f'v_pk_mul_f32 {v(64+2*d,2)}, {v(64+2*d,2)}, {v(sb+2*d,2)}')
                for d in range(4):
                    b.e(f'v_cvt_pk_bf16_f32 {reg(src,1,d)}, {v(64+2*d)}, {v(65+2*d)}')
                if r[0] == 'a':
                    for d in range(4):
                        b.e(f'v_accvgpr_write_b32 {reg(r,1,d)}, {v(56+d)}')
        b.e(f's_mov_b32 {sIT}, 18')
        b.e(f's_mov_b32 {sCS}, {self.SLOT}')
        b.e(f's_mov_b32 {sCX}, 12288')
        b.e(f's_mov_b32 {sOo}, {hx(-12288)}')
        b.e(f's_mov_b32 {sXS}, 0')
        b.e(f's_mov_b32 {sPS}, {self.D-1}')
        b.e(f's_mov_b32 {sPR}, 0')
        b.e(f'v_add_u32 {v(vOutR)}, {3*12288}, {v(vOutR)}')
        b.e(f'v_add_u32 {v(vOutW)}, {3*12288}, {v(vOutW)}')
        b.e('s_waitcnt vmcnt(0) lgkmcnt(0)')
        b.e('s_barrier')
        self.stamp(b)
        return b

    def p2_step(self, b, j, only_b=False):
        c = self.c
        par = j & 1
        bpar = 1 - par
        nr = self.NR[bpar]
        tiles = list(range(12 - 2 * nr, 12))
        Oc, On = O[par], O[bpar]
        ring = [0]

        def rslot():
            s = A_RING + 4 * (ring[0] % NRING)
            ring[0] += 1
            return a(s, 4)
        stream = []
        qs = [3, 4, 5, 0, 1, 2] if nr else [0, 1, 2]
        for n, q in enumerate(qs):
            r = rslot()
            rd = self.xfrag_read(q, L_XR + (6144 if bpar else 0), r)
            ms = []
            for k, T in enumerate(tiles):
                d = v(S2 + 4 * k, 4)
                ms.append(mfma(d, reg(w1reg(T, q), 4), r, '0' if n == 0 else d))
            if q < 3:
                ms.append(mfma(v(On + 4 * q, 4), a(A_ID, 4), r, v(BIAS + 4 * q, 4)))
            stream.append((rd, r, ms))
        nB = sum(len(s[2]) for s in stream)
        if not only_b:
            ks = [(w, U) for U in range(6) for w in range(4)]
            for w, U in ks:
                r = rslot()
                if U < self.NS[par]:
                    rd = f'ds_read_b128 {r}, {v(vPst)} offset:{(w*self.NS[par]+U)*1024}'
                else:
                    rd = f'ds_read_b128 {r}, {v(vPrec)} offset:{par*self.NRM*4096+(w*self.NRM+U-self.NS[par])*1024}'
                ms = []
                for q in range(3):
                    d = v(Oc + 4 * q, 4)
                    ms.append(mfma(d, reg(w2reg(6 * w + U, q), 4), r, d))
                stream.append((rd, r, ms))
        gel = []
        for k in range(0, 8 * nr, 2):
            ya, yb = S2 + k, S2 + k + 1
            ta, tb = T2 + (k & 2), T2 + (k & 2) + 1
            gel += [f'v_mul_f32 {v(ya)}, {v(vRv)}, {v(ya)}', f'v_mul_f32 {v(yb)}, {v(vRv)}, {v(yb)}',
                    f'v_fma_f32 {v(ta)}, {v(ya)}, {v(ya)}, {sK0}', f'v_fma_f32 {v(tb)}, {v(yb)}, {v(yb)}, {sK0}',
                    f'v_mul_f32 {v(ta)}, {v(ta)}, {v(ya)}', f'v_mul_f32 {v(tb)}, {v(tb)}, {v(yb)}',
                    f'v_exp_f32 {v(ta)}, {v(ta)}', f'v_exp_f32 {v(tb)}, {v(tb)}',
                    f'v_add_f32 {v(ta)}, 1.0, {v(ta)}', f'v_add_f32 {v(tb)}, 1.0, {v(tb)}',
                    f'v_rcp_f32 {v(ta)}, {v(ta)}', f'v_rcp_f32 {v(tb)}, {v(tb)}',
                    f'v_mul_f32 {v(ya)}, {v(ya)}, {v(ta)}', f'v_mul_f32 {v(yb)}, {v(yb)}, {v(tb)}',
                    f'v_cvt_pk_bf16_f32 {v(PP+k//2)}, {v(ya)}, {v(yb)}']
            if k % 8 == 6:
                gel.append(Ins(f'ds_write_b128 {v(vPrecW)}, {v(PP+(k//8)*4,4)} offset:{bpar*self.NRM*4096+(k//8)*1024}', ('lw', 0)))
        rho_rd = f'ds_read_b32 {v(vRv)}, {v(vRho)} offset:{64*(1+par)}' if not only_b else f'ds_read_b32 {v(vRv)}, {v(vRho)}'
        if only_b:
            for rd, r, ms in stream:
                b.e(rd)
            b.e(rho_rd)
            b.e('s_waitcnt lgkmcnt(0)')
            for rd, r, ms in stream:
                b.extend(ms)
            b.e('s_nop 7')
            b.extend(gel)
            return
        mf = []
        first = []
        for rd, r, ms in stream:
            first.append(len(mf))
            mf += ms
        NM = len(mf)
        sc = [[] for _ in range(NM)]
        mem = [[] for _ in range(NM)]
        val = [[] for _ in range(NM)]
        AH = 3
        pre = [stream[k][0] for k in range(AH)]
        for k in range(1, len(stream)):
            g = first[k] - 1
            sc[g].append(mkwait(regs=[stream[k][1]]))
            if k + AH - 1 < len(stream) and k + AH - 1 >= AH:
                mem[g].append(stream[k + AH - 1][0])
        free = [g for g in range(NM) if not sc[g] and not mem[g]]

        def place(group, lo):
            scal = [x for x in group[:-1]]
            need = max(1, len(scal))
            idx = [g for g in free if g >= lo][:need]
            for g in idx:
                free.remove(g)
            for k, x in enumerate(scal):
                sc[idx[k]].append(x)
            if scal and isinstance(scal[-1], str) and 'm0' in scal[-1]:
                g2 = [g for g in free if g > idx[-1]][0]
                free.remove(g2)
                mem[g2].append(group[-1])
                return g2
            mem[idx[-1]].append(group[-1])
            return idx[-1]
        epi = []
        for q in range(3):
            epi.append([f'v_cvt_pk_bf16_f32 {v(OC+2*q)}, {v(On+4*q)}, {v(On+4*q+1)}',
                        f'v_cvt_pk_bf16_f32 {v(OC+2*q+1)}, {v(On+4*q+2)}, {v(On+4*q+3)}'])
        head = []
        if nr:
            for q in range(3):
                val[2 + q] += epi[q]
        else:
            head = ['s_nop 3'] + epi[0] + epi[1] + epi[2]
        lo = 5 if nr else 0
        for q in range(3):
            lo = place([Ins(f'ds_write_b64 {v(vOutW)}, {v(OC+2*q,2)} offset:{(6144 if bpar else 0)+q*2048}', ('lw', 0))], lo) + 1
        if nr:
            place([rho_rd], 0)
        gap = lo
        if par == 1:
            for k in range(3):
                gap = place([f'ds_read_b128 {a(A_OUT+4*k,4)}, {v(vOutR)} offset:{k*2048}'], gap) + 1
            gs = gap + 6
            for k in range(3):
                gs = place([mkwait(regs=[a(A_OUT + 4 * k, 4)]),
                            Ins(f'buffer_store_dwordx4 {a(A_OUT+4*k,4)}, {v(vXoff)}, {SO}, {sOo} offen offset:{128*k} {c.ONT}')], gs) + 8
        else:
            for g in self.x_dma(2):
                gap = place(g, gap) + 1
        for g in self.p_dma((j + self.D - 1) & 1, sPM, 0):
            g[-1].tag = ('p', par + self.D - 1)
            gap = place(g, gap) + 1
        late = []
        pq = sPb if (j + self.D - 1) & 1 else sPa
        late.append(f's_add_u32 {pq}, {pq}, {self.PSS}')
        late += [f's_add_u32 {sPS}, {sPS}, 1', [f's_cmp_eq_u32 {sPS}, {self.D}', f's_cselect_b32 {sD1}, {hx(-(self.D-1)*self.SLOT)}, {sCS}', f's_cselect_b32 {sPS}, 0, {sPS}'],
                 f's_add_u32 {sPM}, {sPM}, {sD1}']
        late += [f's_add_u32 {sPR}, {sPR}, 1', [f's_cmp_eq_u32 {sPR}, {self.D}', f's_cselect_b32 {sD2}, {hx(-(self.D-1)*self.SLOT)}, {sCS}', f's_cselect_b32 {sPR}, 0, {sPR}']]
        vtail = [f'v_add_u32 {v(vPst)}, {sD2}, {v(vPst)}']
        if par == 0:
            late += [f's_add_u32 {sXo}, {sXo}, 12288',
                     [f's_cmp_eq_u32 {sXS}, 1', f's_cselect_b32 {sT2}, {hx(-36864)}, {sCX}'],
                     f's_add_u32 {sXM}, {sXM}, {sT2}',
                     [f's_cmp_eq_u32 {sXS}, 3', f's_cselect_b32 {sT2}, {hx(-36864)}, {sCX}']]
            vmid = [f'v_add_u32 {v(vXrA)}, {sT2}, {v(vXrA)}', f'v_add_u32 {v(vXrB)}, {sT2}, {v(vXrB)}']
            late2 = [[f's_cmp_eq_u32 {sXS}, 0', f's_cselect_b32 {sD1}, {hx(-36864)}, {sCX}']]
            vend = [f'v_add_u32 {v(vOutW)}, {sD1}, {v(vOutW)}']
        else:
            late += [f's_add_u32 {sOo}, {sOo}, 12288', f's_mov_b32 s10, {XB}',
                     [f's_cmp_eq_u32 {sXS}, 0', f's_cselect_b32 {sT2}, {hx(-36864)}, {sCX}'],
                     f's_add_u32 {sXS}, {sXS}, 1', f's_and_b32 {sXS}, {sXS}, 3', f's_sub_u32 {sIT}, {sIT}, 1']
            vmid = [f'v_add_u32 {v(vOutR)}, {sT2}, {v(vOutR)}', f'v_add_u32 {v(vRho)}, 128, {v(vRho)}']
            late2 = []
            vend = []
        g0 = max(gap, (gs if par == 1 else 0))
        for x in late + late2:
            x = x if isinstance(x, list) else [x]
            g = [g for g in free if g >= g0][0]
            free.remove(g)
            sc[g] += x
            g0 = g + 1
        val[g0] += vmid + vend
        assert g0 < NM - 1
        cost = lambda x: (8 if (x[:5] in ('v_exp', 'v_rcp')) else 4) if isinstance(x, str) else 20
        mcost = lambda x: 4 if (x if isinstance(x, str) else x.text).startswith('ds_read') else 12
        load = [sum(mcost(x) for x in mem[g]) + sum(cost(x) for x in val[g]) + 4 * max(0, len(sc[g]) - 1) for g in range(NM)]
        if gel:
            gA, gB = nB + 3, NM - 7
            val[gA - 1].insert(0, mkwait(regs=[v(vRv)]))
            tot = sum(cost(x) for x in gel) + sum(load[gA:gB])
            per = tot / (gB - gA)
            acc = 0.0
            gi = 0
            for g in range(gA, gB):
                acc += per - load[g]
                while gi < len(gel) and (acc >= cost(gel[gi]) * 0.5 or g == gB - 1):
                    x = gel[gi]
                    if isinstance(x, Ins):
                        g2 = g + 1
                        while mem[g2]:
                            g2 += 1
                        mem[g2].append(x)
                        load[g2] += 20
                    else:
                        val[g].append(x)
                        acc -= cost(x)
                    gi += 1
        b.extend(pre)
        b.extend(head)
        b.wait(regs=[stream[0][1]])
        for g in range(NM):
            b.e(mf[g])
            b.extend(sc[g]); b.extend(mem[g]); b.extend(val[g])
        b.extend(vtail)
        tags = [('lw', 0), ('p', par + 1)]
        if par == 0:
            tags.append(('x', 1))
        b.wait(tags=tags)
        b.e('s_barrier')

    def p2_body(self):
        b = Block()
        b.e('.p2align 6')
        b.e('L_p2:')
        self.p2_step(b, 0)
        self.p2_step(b, 1)
        b.e(f's_cmp_lg_u32 {sIT}, 0')
        b.e('s_cbranch_scc1 L_p2')
        return b

    def epilogue(self):
        c = self.c
        b = Block()
        self.stamp(b)
        On = O[1]
        b.e('s_nop 3')
        for q in range(3):
            b.e(f'v_cvt_pk_bf16_f32 {v(OC+2*q)}, {v(On+4*q)}, {v(On+4*q+1)}')
            b.e(f'v_cvt_pk_bf16_f32 {v(OC+2*q+1)}, {v(On+4*q+2)}, {v(On+4*q+3)}')
        for q in range(3):
            b.e(f'ds_write_b64 {v(vOutW)}, {v(OC+2*q,2)} offset:{6144+q*2048}')
        b.e('s_waitcnt lgkmcnt(0)')
        b.e('s_barrier')
        for k in range(3):
            b.e(f'ds_read_b128 {a(A_OUT+4*k,4)}, {v(vOutR)} offset:{k*2048}')
        for k in range(3):
            b.wait(regs=[a(A_OUT + 4 * k, 4)])
            b.e(f'buffer_store_dwordx4 {a(A_OUT+4*k,4)}, {v(vXoff)}, {SO}, {sOo} offen offset:{128*k} {c.ONT}')
        if c.STAMP:
            b.e('s_waitcnt vmcnt(0)')
            self.stamp(b)
            b.e(f's_lshl_b32 {sT}, {sWG}, 2')
            b.e(f's_add_u32 {sT}, {sT}, {sW}')
            b.e(f's_lshl_b32 {sT}, {sT}, 6')
            b.e(f's_add_u32 {sT}, {sT}, {STAMP_OFF}')
            b.e(f'v_lshrrev_b32 v12, 2, {v(vLin)}')
            b.e('v_cmp_gt_u32 vcc, 64, v12')
            b.e('s_nop 1')
            b.e('v_cndmask_b32 v12, -1, v12, vcc')
            b.e(f'buffer_store_dword v11, v12, {SM}, {sT} offen')
        b.e('s_waitcnt vmcnt(0)')
        b.e('L_end:')
        b.e('s_endpgm')
        return b

    def build(self):
        pro = self.prologue()
        p1 = self.p1_body()
        ho = self.handoff()
        p2 = self.p2_body()
        ep = self.epilogue()
        segs = [(pro, 0)] + [(p1, 0)] * 3 + [(ho, 0)]
        tr = trace(segs)
        for m in range(6):
            for i in p2.ins:
                it = m
                if i.tag and i.tag[0] == 'p':
                    tr.append((i, 2 * m))
                elif i.wait is not None:
                    tr.append((i, m))
                else:
                    tr.append((i, m))
        tr += trace([(ep, 0)])
        tr2 = []
        for i, it in tr:
            tr2.append((i, it))
        self._resolve(tr2)
        errs = check_waits(tr2) + check_hazards(tr2)
        txt = []
        for blk in (pro, p1, ho, p2, ep):
            txt += [i.render() for i in blk.ins]
        return txt, errs

    def _resolve(self, tr):
        import asmlib
        orig = asmlib._abs

        def _abs(tag, it, wait=False):
            return orig(tag, it)
        cap = {'lg': 15, 'vm': 63}
        ops = {'lg': [], 'vm': []}
        done = {'lg': 0, 'vm': 0}
        for ins, it in tr:
            if ins.kind in ('ds', 'vm'):
                cl = 'lg' if ins.kind == 'ds' else 'vm'
                ops[cl].append((ins.w, (ins.tag[0], it + ins.tag[1]) if ins.tag else None))
            elif ins.kind == 'wait' and ins.wait is not None:
                want = {(t[0], (2 * it if t[0] == 'p' else it) + t[1]) for t in ins.wait['tags']}
                for cl in ('lg', 'vm'):
                    for k in range(len(ops[cl]) - 1, done[cl] - 1, -1):
                        w, tg = ops[cl][k]
                        if (w & ins.wait['regs']) or (tg is not None and tg in want):
                            n = min(len(ops[cl]) - 1 - k, cap[cl])
                            ins.N[cl] = min(ins.N.get(cl, 99), n)
                            break
            elif ins.kind == 'wait':
                m = re.search(r'vmcnt\((\d+)\)', ins.text)
                if m:
                    done['vm'] = max(done['vm'], len(ops['vm']) - int(m.group(1)))
                m = re.search(r'lgkmcnt\((\d+)\)', ins.text)
                if m:
                    done['lg'] = max(done['lg'], len(ops['lg']) - int(m.group(1)))


HEADER = '''; Kernarg layout for this problem (72 bytes, ptrs only, base s[0:1]):
; @launch grid=(256,1,1) block=(256,1,1) lds=%d
.amdgcn_target "amdgcn-amd-amdhsa--gfx950"
.text
.globl %s_kernel
.p2align 8
.type %s_kernel,@function
%s_kernel:
'''
FOOTER = '''
.section .rodata,"a"
.p2align 6
.amdhsa_kernel %s_kernel
  .amdhsa_next_free_vgpr 512
  .amdhsa_next_free_sgpr 96
  .amdhsa_accum_offset 256
  .amdhsa_group_segment_fixed_size 0
  .amdhsa_kernarg_size 72
  .amdhsa_user_sgpr_count 2
  .amdhsa_user_sgpr_kernarg_segment_ptr 1
  .amdhsa_system_sgpr_workgroup_id_x 1
  .amdhsa_float_denorm_mode_32 3
.end_amdhsa_kernel
'''


def generate(**kw):
    cfg = Cfg()
    for k, x in kw.items():
        assert hasattr(cfg, k), k
        setattr(cfg, k, x)
    g = Gen(cfg)
    txt, errs = g.build()
    s = HEADER % (LDS_BYTES, NAME, NAME, NAME) + '\n'.join(txt) + FOOTER % NAME
    return s, errs


if __name__ == '__main__':
    out = sys.argv[1]
    kw = {}
    for x in sys.argv[2:]:
        k, val = x.split('=', 1)
        kw[k] = eval(val)
    s, errs = generate(**kw)
    seen = set()
    for e in errs:
        if e not in seen:
            print('ERR', e)
            seen.add(e)
    open(out, 'w').write(s)
    print('written', out, len(s), 'bytes of text;', len(seen), 'findings')
```
